```python
import torch

def _softmax(x, axis=-1):
    return torch.softmax(x, dim=axis)
def _gelu(x):
    return torch.nn.functional.gelu(x, approximate="tanh")
def _silu(x):
    return torch.nn.functional.silu(x)
def _sigmoid(x):
    return torch.sigmoid(x)
def _layernorm(x, axis=-1, eps=1e-5):
    m = x.mean(dim=axis, keepdim=True)
    v = x.var(dim=axis, keepdim=True, unbiased=False)
    return (x - m) / torch.sqrt(v + eps)
def _scatter_add(tgt, idx, src, axis=0):
    return tgt.clone().index_add_(axis, idx, src)
def _segment_sum(src, seg, n):
    out = torch.zeros((n,) + src.shape[1:], dtype=src.dtype)
    return out.index_add_(0, seg, src)
def _pad(x, pw):
    flat = tuple(v for pair in reversed(pw) for v in pair)
    return torch.nn.functional.pad(x, flat)

kernel_name = 'sequential_preLN__grouped_kv_mqa__glu_gated_geglu__prompt'

def setup_inputs():

    _w = (lambda a: (lambda t: t.to(torch.bfloat16) if t.is_floating_point() else t)(torch.as_tensor(a)))
    def _A_setup():
        B, S, D, H = 1, 2048, 576, 32
        Dh = D // H
        return {
            "x": _w((lambda *s: torch.randn(*s, dtype=torch.bfloat16) * 0.05)(B, S, D)),
            "wq": _w((lambda *s: torch.randn(*s, dtype=torch.bfloat16) * 0.05)(D, H * Dh)),
            "wk": _w((lambda *s: torch.randn(*s, dtype=torch.bfloat16) * 0.05)(D, Dh)),
            "wv": _w((lambda *s: torch.randn(*s, dtype=torch.bfloat16) * 0.05)(D, Dh)),
            "wo": _w((lambda *s: torch.randn(*s, dtype=torch.bfloat16) * 0.05)(H * Dh, D)),
        }
    _A_in = _A_setup()

    def _B_setup():
        B, S, Dm, Df = 1, 2048, 576, 4608
        return {
            "x": _w((lambda *s: torch.randn(*s, dtype=torch.bfloat16) * 0.05)(B, S, Dm)),
            "w_gate": _w((lambda *s: torch.randn(*s, dtype=torch.bfloat16) * 0.8)(Dm, Df) * (Dm ** -0.5)),
            "w_up": _w((lambda *s: torch.randn(*s, dtype=torch.bfloat16) * 0.8)(Dm, Df) * (Dm ** -0.5)),
            "w_down": _w((lambda *s: torch.randn(*s, dtype=torch.bfloat16) * 0.8)(Df, Dm) * (Df ** -0.5)),
        }
    _B_in = _B_setup()

    return {
        "A_x": _A_in["x"],
        "A_wq": _A_in["wq"],
        "A_wk": _A_in["wk"],
        "A_wv": _A_in["wv"],
        "A_wo": _A_in["wo"],
        "B_x": _B_in["x"],
        "B_w_gate": _B_in["w_gate"],
        "B_w_up": _B_in["w_up"],
        "B_w_down": _B_in["w_down"],
    }

def reference(A_x, A_wq, A_wk, A_wv, A_wo, B_x, B_w_gate, B_w_up, B_w_down):
    def _A_ref(x, wq, wk, wv, wo):
        B, S, D = x.shape
        H = 32
        Dh = D // H
        q = (lambda x, *d: x.permute(*d))((x @ wq).reshape(B, S, H, Dh), 0, 2, 1, 3)
        k = x @ wk
        v = x @ wv
        scores = torch.einsum("bhqd,bkd->bhqk", q, k) * (Dh ** -0.5)
        p = _softmax(scores, axis=-1)
        o = torch.einsum("bhqk,bkd->bhqd", p, v)
        return (lambda x, *d: x.permute(*d))(o, 0, 2, 1, 3).reshape(B, S, H * Dh) @ wo

    def _B_ref(x, w_gate, w_up, w_down):
        g = torch.einsum("bsd,df->bsf", x, w_gate)
        u = torch.einsum("bsd,df->bsf", x, w_up)
        h = _gelu(g) * u
        return torch.einsum("bsf,fd->bsd", h, w_down)

    x = A_x
    h = x + _A_ref(_layernorm(x, axis=-1), A_wq, A_wk, A_wv, A_wo)
    h2 = h + _B_ref(_layernorm(h, axis=-1), B_w_gate, B_w_up, B_w_down)
    return h2
```

```python
import re

class Asm:
    def __init__(self):
        self.lines = []
    def __call__(self, s):
        for l in s.split("\n"):
            l = l.strip()
            if l: self.lines.append(l)
    def label(self, name): self.lines.append(name + ":")
    def ext(self, ls):
        for l in ls: self(l)
    def text(self):
        return "\n".join((l if l.endswith(":") or l.startswith(".") else "    " + l) for l in self.lines) + "\n"

def vr(b, n=1): return f"v{b}" if n == 1 else f"v[{b}:{b+n-1}]"
def ar(b, n=1): return f"a{b}" if n == 1 else f"a[{b}:{b+n-1}]"
def sr(b, n=1): return f"s{b}" if n == 1 else f"s[{b}:{b+n-1}]"
def ur(b, n=1):
    return vr(b, n) if b < 256 else ar(b - 256, n)

_reg = re.compile(r"^-?\|?(?:abs\()?([vas])(?:(\d+)|\[(\d+):(\d+)\])\)?\|?$")
def regs(tok):
    tok = tok.strip()
    if tok == "vcc": return {("s", 106), ("s", 107)}
    if tok == "exec": return {("s", 126), ("s", 127)}
    if tok == "m0": return {("s", 124)}
    m = _reg.match(tok)
    if not m: return set()
    k = m.group(1)
    if m.group(2) is not None: return {(k, int(m.group(2)))}
    return {(k, i) for i in range(int(m.group(3)), int(m.group(4)) + 1)}

TRANS = ("v_exp_f32", "v_log_f32", "v_rcp_f32", "v_rsq_f32", "v_sqrt_f32", "v_sin_f32", "v_cos_f32")
def passes(mn):
    if "32x32x4_2b" in mn: return 16
    if "32x32" in mn: return 8
    if "16x16" in mn: return 4
    if "4x4x4" in mn: return 2
    raise ValueError(mn)

class I:
    def __init__(self, text):
        self.text = text
        t = text.split(";")[0].strip()
        self.label = t[:-1] if t.endswith(":") else None
        self.mn = ""; self.ops = []; self.mods = ""
        self.d = set(); self.u = set(); self.kind = "other"
        self.A = self.B = self.C = set()
        if self.label or t.startswith(".") or not t:
            self.kind = "none"; return
        p = t.split(None, 1); self.mn = mn = p[0]
        rest = p[1] if len(p) > 1 else ""
        ops = [o.strip() for o in rest.split(",")] if rest else []
        if ops:
            last = ops[-1].split()
            if last:
                ops[-1] = last[0]; self.mods = " ".join(last[1:])
        self.ops = ops
        R = [regs(o) for o in ops]
        allu = lambda i: set().union(*R[i:]) if len(R) > i else set()
        if mn.startswith("v_mfma"):
            self.kind = "mfma"; self.d = R[0]; self.A = R[1]; self.B = R[2]; self.C = R[3]; self.u = allu(1); self.p = passes(mn)
        elif mn.startswith("v_smfmac"):
            self.kind = "mfma"; self.d = R[0]; self.A = R[1]; self.B = R[2] | R[3]; self.C = R[0]; self.u = allu(0); self.p = passes(mn)
        elif mn.startswith("v_"):
            self.kind = "valu"
            if mn.startswith("v_cmp"):
                self.d = R[0]; self.u = allu(1)
                if mn.startswith("v_cmpx"): self.d = self.d | regs("exec")
            elif "_co_" in mn or mn.startswith("v_mad_u64") :
                self.d = R[0] | R[1]; self.u = allu(2)
            elif mn.startswith("v_permlane") and "swap" in mn:
                self.d = R[0] | R[1]; self.u = R[0] | R[1]
            elif mn.startswith(("v_fmac", "v_pk_fmac", "v_dot2c", "v_writelane")) or "dpp" in mn or "sdwa" in mn:
                self.d = R[0]; self.u = allu(0)
            elif mn == "v_nop": pass
            else:
                self.d = R[0]; self.u = allu(1)
        elif mn.startswith(("buffer_", "global_")):
            self.kind = "vmem"
            lds = "lds" in self.mods.split() or "_lds_" in mn
            self.lds = lds
            if "load" in mn and not lds:
                self.d = R[0]; self.u = allu(1)
                if "d16" in mn: self.u = allu(0)
            elif "atomic" in mn and "sc0" in self.mods.split():
                self.d = R[0]; self.u = allu(0)
            else:
                self.u = allu(0)
            if lds: self.u = self.u | regs("m0")
            self.wide = ("store" in mn) and ("x4" in mn or "x3" in mn)
            if self.wide: self.sdata = R[0] if mn.startswith("buffer_") else R[1]
        elif mn.startswith("ds_"):
            self.kind = "ds"
            if "read" in mn or "permute" in mn or "swizzle" in mn or "_rtn" in mn:
                self.d = R[0]; self.u = allu(1)
            else: self.u = allu(0)
        elif mn.startswith("s_"):
            self.kind = "salu"
            if mn.startswith(("s_cmp", "s_cbranch", "s_branch", "s_waitcnt", "s_nop", "s_barrier", "s_endpgm", "s_setprio", "s_sleep", "s_bitcmp")):
                self.u = allu(0)
            else:
                self.d = R[0] if R else set(); self.u = allu(1)
                if "saveexec" in mn: self.d = self.d | regs("exec")
    def states(self):
        if self.kind == "none": return 0
        if self.mn == "s_nop": return int(self.ops[0], 0) + 1
        return 1

def need(p, c):
    vd = {r for r in p.d if r[0] in "va"}; sd = {r for r in p.d if r[0] == "s"}
    best = (0, "")
    def up(n, why):
        nonlocal best
        if n > best[0]: best = (n, why)
    if p.kind == "valu":
        if c.kind == "mfma" and vd & c.u: up(2, "valu->mfma")
        if c.kind == "valu":
            if p.mn in TRANS and c.mn not in TRANS and vd & c.u: up(1, "trans->valu")
            if ("dpp" in c.mn or "row_" in c.mods or "quad_perm" in c.mods) and vd & c.u: up(2, "valu->dpp")
            if c.mn.startswith("v_permlane") and vd & c.u: up(2, "valu->permlane")
            if c.mn.startswith(("v_readlane", "v_readfirstlane")) and vd & c.u: up(1, "valu->readlane")
            if sd & c.u:
                up(4 if c.mn.startswith(("v_readlane", "v_writelane")) else 2, "valu sgpr->valu")
            if ("sdwa" in p.mn or "op_sel" in p.mods) and not p.mn.startswith("v_pk") and vd & (c.u | c.d): up(1, "opsel->valu")
        if c.kind == "vmem" and sd & c.u: up(5, "valu sgpr->vmem")
        if regs("exec") & p.d:
            if c.kind == "mfma": up(4, "exec->mfma")
            if c.mn.startswith(("v_readlane", "v_readfirstlane", "v_writelane", "v_permlane")): up(4, "exec->lane")
            if "dpp" in c.mn: up(5, "exec->dpp")
    if p.kind == "salu" and regs("m0") & p.d and c.kind == "vmem" and getattr(c, "lds", False): up(1, "m0->ldsdma")
    if p.kind == "vmem" and getattr(p, "wide", False) and p.sdata & c.d:
        up(2 if c.kind in ("valu", "mfma") else 1, "store data war")
    if p.kind == "mfma":
        idx = {2: 0, 4: 1, 8: 2, 16: 3}[p.p]
        if c.kind == "mfma":
            if p.d & (c.A | c.B): up((5, 8, 12, 20)[idx], "mfma D->A/B")
            if p.d & c.C:
                if p.d == c.C and p.p == c.p: up((2, 0, 0, 0)[idx], "mfma chain")
                else: up((4, 6, 10, 18)[idx], "mfma D->C overlap")
            elif p.d & c.d and not (p.d == c.d and p.p == c.p):
                up((4, 6, 10, 18)[idx], "mfma D->D waw")
        elif c.kind in ("valu", "vmem", "ds") and p.d & (c.u | c.d):
            up((5, 8, 12, 20)[idx], "mfma D->valu/mem")
        if c.kind == "valu" and p.C & c.d: up((1, 3, 7, 15)[idx], "mfma C war")
    return best

def check(lines, verbose=True):
    ins = [I(l) for l in lines]
    lab = {x.label: i for i, x in enumerate(ins) if x.label}
    def succ(i):
        x = ins[i]
        if x.mn == "s_endpgm": return []
        if x.mn == "s_branch": return [lab[x.ops[0]]]
        if x.mn.startswith("s_cbranch"): return [i + 1, lab[x.ops[0]]]
        return [i + 1] if i + 1 < len(ins) else []
    bad = []
    for i, p in enumerate(ins):
        if p.kind in ("none", "ds") or (p.kind == "salu" and not regs("m0") & p.d): continue
        if p.kind == "vmem" and not getattr(p, "wide", False): continue
        lim = 20 if p.kind == "mfma" else 5
        stack = [(j, 0) for j in succ(i)]; seen = set()
        while stack:
            j, d = stack.pop()
            if d >= lim or (j, d) in seen: continue
            seen.add((j, d))
            c = ins[j]
            if c.kind != "none":
                n, why = need(p, c)
                if n > d: bad.append((i, j, n, d, why))
            for k in succ(j): stack.append((k, d + c.states()))
    if verbose:
        for i, j, n, d, why in bad[:40]:
            print(f"HAZARD {why}: need {n} have {d}\n   [{i}] {ins[i].text}\n   [{j}] {ins[j].text}")
    return bad

def kd(name, vgpr, accum, sgpr=102):
    return f""".amdhsa_kernel {name}
  .amdhsa_next_free_vgpr {vgpr}
  .amdhsa_next_free_sgpr {sgpr}
  .amdhsa_accum_offset {accum}
  .amdhsa_group_segment_fixed_size 0
  .amdhsa_kernarg_size 96
  .amdhsa_user_sgpr_count 2
  .amdhsa_user_sgpr_kernarg_segment_ptr 1
  .amdhsa_system_sgpr_workgroup_id_x 1
.end_amdhsa_kernel
"""
```

```python
import sys, importlib
from asmlib import *
HEAD = open("sequential_preLN__grouped_kv_mqa__glu_gated_geglu__prompt.s.ref").read().split("; Override launch")[0]
def build(kernels, out):
    txt = HEAD
    for a, m in kernels:
        kn = "" if m.get("single") else f"kernel={m['name']} "
        txt += f"; @launch {kn}grid=({m['grid']},1,1) block=({m['block']},1,1) lds={m['lds']}\n"
    txt += '.amdgcn_target "amdgcn-amd-amdhsa--gfx950"\n.text\n'
    seen = set(); nb = 0
    for a, m in kernels:
        if m['name'] in seen: continue
        seen.add(m['name'])
        nb += len(check(a.lines))
        txt += f".globl {m['name']}\n.p2align 8\n.type {m['name']},@function\n" + a.text()
    txt += '.section .rodata,"a"\n'
    seen = set()
    for a, m in kernels:
        if m['name'] in seen: continue
        seen.add(m['name'])
        txt += ".p2align 6\n" + kd(m['name'], m['vgpr'], m['accum'])
    open(out, "w").write(txt)
    print("wrote", out, len(txt), "bytes; hazards:", nb)
if __name__ == "__main__":
    names = sys.argv[2].split(",")
    mods = dict(k0=("k0_shuffle", "gen_k0"), k1=("k1_qkv", "gen_k1"), k2=("k2_attn", "gen_k2"), k3=("k3_ffn", "gen_k3"), k4=("k4_red", "gen_k4"), km=("km_main","gen_km"), kp=("kp_probe","gen_kp"), kd=("kd_delay","gen_kd"), kc=("kd_delay","gen_kc"), kr=("kr_read","gen_kr"), ks=("ks_single","gen_ks"), kw=("kw_warm","gen_kw"), k9=("k9_nop","gen_k9"), kx=("kx_lat","gen_kx"), k8=("k9_nop","gen_k8"))
    ks = [getattr(importlib.import_module(mods[n][0]), mods[n][1])() for n in names]
    build(ks, sys.argv[1])
```
